```python
import torch

def _softmax(x, axis=-1):
    return torch.softmax(x, dim=axis)
def _gelu(x):
    return torch.nn.functional.gelu(x, approximate="tanh")
def _silu(x):
    return torch.nn.functional.silu(x)
def _sigmoid(x):
    return torch.sigmoid(x)
def _layernorm(x, axis=-1, eps=1e-5):
    m = x.mean(dim=axis, keepdim=True)
    v = x.var(dim=axis, keepdim=True, unbiased=False)
    return (x - m) / torch.sqrt(v + eps)
def _scatter_add(tgt, idx, src, axis=0):
    return tgt.clone().index_add_(axis, idx, src)
def _segment_sum(src, seg, n):
    out = torch.zeros((n,) + src.shape[1:], dtype=src.dtype)
    return out.index_add_(0, seg, src)
def _pad(x, pw):
    flat = tuple(v for pair in reversed(pw) for v in pair)
    return torch.nn.functional.pad(x, flat)

kernel_name = 'standalone__gqa_block_cached__sampling'

def setup_inputs():

    _w = (lambda a: (lambda t: t.to(torch.bfloat16) if t.is_floating_point() else t)(torch.as_tensor(a)))
    B, Sq, D = 16, 1, 1024
    Hq, Hkv, Sk, Dh = 32, 4, 4096, 128
    assert Hq % Hkv == 0, (Hq, Hkv)
    return {
        "x": _w((lambda *s: torch.randn(*s, dtype=torch.bfloat16) * 0.8)(B, Sq, D)),
        "k_cache": _w((lambda *s: torch.randn(*s, dtype=torch.bfloat16) * 0.8)(B, Hkv, Sk, Dh)),
        "v_cache": _w((lambda *s: torch.randn(*s, dtype=torch.bfloat16) * 0.05)(B, Hkv, Sk, Dh)),
        "wq": _w((lambda *s: torch.randn(*s, dtype=torch.bfloat16) * 0.8)(D, Hq * Dh) * (D ** -0.5)),
        "wo": _w((lambda *s: torch.randn(*s, dtype=torch.bfloat16) * 0.05)(Hq * Dh, D) * ((Hq * Dh) ** -0.5)),
    }

def reference(x, k_cache, v_cache, wq, wo):
    B, Sq, D = x.shape
    Hq, Dh = 32, 128
    Hkv = k_cache.shape[1]
    rep = Hq // Hkv
    q = (lambda x, *d: x.permute(*d))((x @ wq).reshape(B, Sq, Hq, Dh), 0, 2, 1, 3)
    k = (lambda x, n, axis: torch.repeat_interleave(x, n, dim=axis))(k_cache, rep, axis=1)
    v = (lambda x, n, axis: torch.repeat_interleave(x, n, dim=axis))(v_cache, rep, axis=1)
    scores = torch.einsum("bhqd,bhkd->bhqk", q, k) * (Dh ** -0.5)
    p = _softmax(scores, axis=-1)
    o = torch.einsum("bhqk,bhkd->bhqd", p, v)
    return (lambda x, *d: x.permute(*d))(o, 0, 2, 1, 3).reshape(B, Sq, Hq * Dh) @ wo
```

```python
import sys

HDR = """; @launch grid=({grid},1,1) block=({block},1,1) lds={lds}
.amdgcn_target "amdgcn-amd-amdhsa--gfx950"
.text
.globl standalone__gqa_block_cached__sampling_kernel
.p2align 8
.type standalone__gqa_block_cached__sampling_kernel,@function
standalone__gqa_block_cached__sampling_kernel:
"""
FTR = """
.section .rodata,"a"
.p2align 6
.amdhsa_kernel standalone__gqa_block_cached__sampling_kernel
  .amdhsa_next_free_vgpr {nvgpr}
  .amdhsa_next_free_sgpr 102
  .amdhsa_accum_offset {accum}
  .amdhsa_group_segment_fixed_size 0
  .amdhsa_kernarg_size 64
  .amdhsa_user_sgpr_count 2
  .amdhsa_user_sgpr_kernarg_segment_ptr 1
  .amdhsa_system_sgpr_workgroup_id_x 1
.end_amdhsa_kernel
"""

def gen(mode="lds", W=4, D=16, pol="", interleave=False, nwg=256, kv="seq", lds=None):
    per_wg = (64 << 20) // nwg
    per_wave_n = per_wg // 1024 // W
    if lds is None:
        lds = W * D * 1024 if mode == "lds" else 0
        lds = max(lds, 81920 if nwg == 256 else 0)
    o = []
    a = o.append
    a(HDR.format(grid=nwg, block=W * 64, lds=lds))
    a(f"    s_cmp_ge_u32 s2, {nwg}")
    a("    s_cbranch_scc1 L_end")
    a("    s_memrealtime s[40:41]")
    a("    s_load_dwordx4 s[4:7], s[0:1], 8      ; K, V")
    a("    s_load_dwordx2 s[16:17], s[0:1], 56   ; ws")
    a("    v_lshrrev_b32 v2, 6, v0")
    a("    v_and_b32 v3, 63, v0")
    a("    s_nop 0")
    a("    v_readfirstlane_b32 s20, v2")
    a("    s_waitcnt lgkmcnt(0)")
    a("    s_mov_b32 s8, s4")
    a("    s_and_b32 s9, s5, 0xffff")
    a("    s_mov_b32 s10, 0x4000000")
    a("    s_mov_b32 s11, 0x20000")
    a("    s_mov_b32 s12, s6")
    a("    s_and_b32 s13, s7, 0xffff")
    a("    s_mov_b32 s14, 0x4000000")
    a("    s_mov_b32 s15, 0x20000")
    a("    s_mov_b32 s24, s16")
    a("    s_and_b32 s25, s17, 0xffff")
    a("    s_mov_b32 s26, 0x10000000")
    a("    s_mov_b32 s27, 0x20000")
    a(f"    s_mul_i32 s21, s2, {per_wg}")
    if interleave:
        tile = interleave
        a(f"    s_mul_i32 s22, s20, {tile*1024}")
    else:
        a(f"    s_mul_i32 s22, s20, {per_wg // W}")
    a("    s_add_u32 s21, s21, s22")
    if mode in ("lds", "reg"):
        a("    v_lshlrev_b32 v1, 4, v3")
    elif mode == "regA":
        a("    v_and_b32 v4, 15, v3")
        a("    v_lshrrev_b32 v5, 4, v3")
        a("    v_lshlrev_b32 v4, 8, v4")
        a("    v_lshlrev_b32 v5, 4, v5")
        a("    v_add_u32 v1, v4, v5")
    if mode == "lds":
        a(f"    s_mul_i32 s23, s20, {D*1024}       ; lds base of this wave")
    seq = []
    def off(i):
        if mode == "regA":
            t, j = divmod(i, 4)
            base = t * 4096
            if interleave:
                tile = interleave * 1024
                q, r = divmod(base, tile)
                base = q * tile * W + r
            return base + j * 64
        base = i * 1024
        if interleave:
            tile = interleave * 1024
            q, r = divmod(base, tile)
            base = q * tile * W + r
        return base
    if kv == "seq":
        for t in (0, 1):
            for i in range(per_wave_n):
                seq.append((t, off(i)))
    else:
        g = int(kv)
        for i0 in range(0, per_wave_n, g):
            for t in (0, 1):
                for i in range(i0, i0 + g):
                    seq.append((t, off(i)))
    for n, (t, of) in enumerate(seq):
        srd = "s[8:11]" if t == 0 else "s[12:15]"
        slot = n % D
        if n >= D:
            a(f"    s_waitcnt vmcnt({D-1})")
        a(f"    s_add_u32 s28, s21, {of}")
        if mode == "lds":
            a(f"    s_add_u32 m0, s23, {slot*1024}")
            a("    s_nop 0")
            a(f"    buffer_load_dwordx4 v1, {srd}, s28 offen {pol} lds".replace("  lds", " lds"))
        else:
            r = 8 + slot * 4
            a(f"    buffer_load_dwordx4 v[{r}:{r+3}], v1, {srd}, s28 offen {pol}")
    a("    s_waitcnt vmcnt(0)")
    a("    s_memrealtime s[42:43]")
    a("    s_waitcnt lgkmcnt(0)")
    a(f"    s_mul_i32 s28, s2, {W}")
    a("    s_add_u32 s28, s28, s20")
    a("    s_lshl_b32 s28, s28, 5")
    a("    s_getreg_b32 s44, hwreg(HW_REG_XCC_ID)")
    a("    s_getreg_b32 s45, hwreg(HW_REG_HW_ID)")
    a("    v_mov_b32 v4, s40")
    a("    v_mov_b32 v5, s41")
    a("    v_mov_b32 v6, s42")
    a("    v_mov_b32 v7, s43")
    a("    v_mov_b32 v2, 0")
    a("    v_cmp_eq_u32 vcc, 0, v3")
    a("    s_and_saveexec_b64 s[30:31], vcc")
    a("    buffer_store_dwordx4 v[4:7], v2, s[24:27], s28 offen")
    a("    s_nop 1")
    a("    v_mov_b32 v4, s44")
    a("    v_mov_b32 v5, s45")
    a("    buffer_store_dwordx2 v[4:5], v2, s[24:27], s28 offen offset:16")
    a("    s_waitcnt vmcnt(0)")
    a("L_end:")
    a("    s_endpgm")
    nv = 8 if mode == "lds" else 8 + D * 4
    if nv > 256:
        raise ValueError("too many regs")
    a(FTR.format(nvgpr=nv, accum=(nv + 3) // 4 * 4))
    return "\n".join(o)

if __name__ == "__main__":
    import itertools, os
    os.makedirs("k", exist_ok=True)
    cfgs = []
    for mode in ("lds", "reg", "regA"):
        for W, D in ((4, 8), (4, 16), (4, 32), (8, 8), (8, 16), (16, 8)):
            for pol in ("", "nt"):
                cfgs.append(dict(mode=mode, W=W, D=D, pol=pol))
    for c in cfgs:
        name = f"k/s_{c['mode']}_W{c['W']}_D{c['D']}_{c['pol'] or 'def'}.s"
        open(name, "w").write(gen(**c))
        print(name)
```

```python
import os
from gen_stream import HDR, FTR

def gen(seg=32, pol="nt", xcd_aware=True, W=4, D=8, rowbytes=8192):
    ncol = rowbytes // seg
    nrows = (64 << 20) // rowbytes
    ksplit = 256 // ncol if ncol < 256 else 1
    assert ncol * ksplit == 256
    rows_wg = nrows // ksplit
    lanes_per_row = seg // 16
    rows_per_inst = 64 // lanes_per_row
    n = rows_wg // rows_per_inst // W
    o = []; a = o.append
    a(HDR.format(grid=256, block=W * 64, lds=max(81920, W * D * 1024)))
    a("    s_cmp_ge_u32 s2, 256")
    a("    s_cbranch_scc1 L_end")
    a("    s_memrealtime s[40:41]")
    a("    s_load_dwordx4 s[4:7], s[0:1], 8      ; K, V")
    a("    s_load_dwordx2 s[16:17], s[0:1], 56   ; ws")
    a("    v_lshrrev_b32 v2, 6, v0")
    a("    v_and_b32 v3, 63, v0")
    a("    s_nop 0")
    a("    v_readfirstlane_b32 s20, v2")
    a("    s_waitcnt lgkmcnt(0)")
    for d, s in ((8, 4), (12, 6), (24, 16)):
        a(f"    s_mov_b32 s{d}, s{s}")
        a(f"    s_and_b32 s{d+1}, s{s+1}, 0xffff")
        a(f"    s_mov_b32 s{d+2}, {0x4000000 if d != 24 else 0x10000000}")
        a(f"    s_mov_b32 s{d+3}, 0x20000")
    if xcd_aware:
        a("    s_and_b32 s33, s2, 7")
        a("    s_lshl_b32 s33, s33, 5")
        a("    s_lshr_b32 s34, s2, 3")
        a("    s_add_u32 s33, s33, s34     ; t = (i%8)*32 + i/8")
    else:
        a("    s_mov_b32 s33, s2")
    a(f"    s_and_b32 s34, s33, {ncol-1}")
    a(f"    s_lshr_b32 s35, s33, {ncol.bit_length()-1}   ; k split")
    a(f"    s_mul_i32 s21, s34, {seg}")
    a(f"    s_mul_i32 s35, s35, {rows_wg*rowbytes}")
    a("    s_add_u32 s21, s21, s35")
    a(f"    s_mul_i32 s22, s20, {rows_per_inst*rowbytes}")
    a("    s_add_u32 s21, s21, s22")
    a(f"    v_lshrrev_b32 v4, {lanes_per_row.bit_length()-1}, v3")
    a(f"    v_mul_u32_u24 v4, {rowbytes}, v4")
    a(f"    v_and_b32 v5, {lanes_per_row-1}, v3")
    a("    v_lshlrev_b32 v5, 4, v5")
    a("    v_add_u32 v1, v4, v5")
    a(f"    s_mul_i32 s23, s20, {D*1024}")
    a("    s_mov_b32 s31, 0")
    for t, srd in ((0, "s[8:11]"), (1, "s[12:15]")):
        a("    s_mov_b32 s32, 0")
        a("    s_mov_b32 s28, s21")
        a(f"L_loop{t}:")
        a("    s_add_u32 m0, s23, s31")
        a(f"    s_waitcnt vmcnt({D-1})")
        a(f"    buffer_load_dwordx4 v1, {srd}, s28 offen {pol} lds".replace("  lds", " lds"))
        a("    s_add_u32 s31, s31, 1024")
        a(f"    s_and_b32 s31, s31, {D*1024-1}")
        a(f"    s_add_u32 s28, s28, {rows_per_inst*rowbytes*W}")
        a("    s_add_u32 s32, s32, 1")
        a(f"    s_cmp_lt_u32 s32, {n}")
        a(f"    s_cbranch_scc1 L_loop{t}")
    a("    s_waitcnt vmcnt(0)")
    a("    s_memrealtime s[42:43]")
    a("    s_waitcnt lgkmcnt(0)")
    a(f"    s_mul_i32 s28, s2, {W}")
    a("    s_add_u32 s28, s28, s20")
    a("    s_lshl_b32 s28, s28, 5")
    a("    s_getreg_b32 s44, hwreg(HW_REG_XCC_ID)")
    a("    s_getreg_b32 s45, hwreg(HW_REG_HW_ID)")
    for r, s in ((4, 40), (5, 41), (6, 42), (7, 43)):
        a(f"    v_mov_b32 v{r}, s{s}")
    a("    v_mov_b32 v2, 0")
    a("    v_cmp_eq_u32 vcc, 0, v3")
    a("    s_and_saveexec_b64 s[30:31], vcc")
    a("    buffer_store_dwordx4 v[4:7], v2, s[24:27], s28 offen")
    a("    s_nop 1")
    a("    v_mov_b32 v4, s44")
    a("    v_mov_b32 v5, s45")
    a("    buffer_store_dwordx2 v[4:5], v2, s[24:27], s28 offen offset:16")
    a("    s_waitcnt vmcnt(0)")
    a("L_end:")
    a("    s_endpgm")
    a(FTR.format(nvgpr=8, accum=8))
    return "\n".join(o)

if __name__ == "__main__":
    os.makedirs("k4", exist_ok=True)
    for seg in (32, 64, 128, 256, 512, 1024):
        for pol in ("", "nt", "sc1 nt"):
            for xa in (True, False):
                if seg >= 128 and not xa and pol != "nt": continue
                open(f"k4/g_seg{seg:04d}_{pol.replace(' ','') or 'def'}_{'xa' if xa else 'lin'}.s", "w").write(gen(seg, pol, xa))
    for seg in (64, 128, 256):
        open(f"k4/h_rb2048_seg{seg:04d}_nt.s", "w").write(gen(seg, "nt", True, rowbytes=2048))
```

```python
import os, sys
from gen_stream import HDR, FTR

def gen(W=1, D=32, pol="nt", cmap="lin", rot=0, tile=1, Q=1, kvmix=0, touch=0, xop='', xn=1, xb=1, xpol='sc1', xdelay=60, xstag=0, xshare=0, xstride=1024, xwait=0, xpre='no', xwb=0, xwg=0, rsel='i', grp=1):
    half = 256 * 1024
    n = half // 1024 // W
    o = []; a = o.append
    a(HDR.format(grid=256, block=(W + (1 if xop else 0)) * 64, lds=132096))
    a("    s_cmp_ge_u32 s2, 256")
    a("    s_cbranch_scc1 L_end")
    a("    s_memrealtime s[40:41]")
    a("    s_load_dwordx4 s[4:7], s[0:1], 8      ; K, V")
    a("    s_load_dwordx2 s[16:17], s[0:1], 56   ; ws")
    a("    v_lshrrev_b32 v2, 6, v0")
    a("    v_and_b32 v3, 63, v0")
    a("    s_nop 0")
    a("    v_readfirstlane_b32 s20, v2")
    a("    s_waitcnt lgkmcnt(0)")
    for d, s in ((8, 4), (12, 6), (24, 16)):
        a(f"    s_mov_b32 s{d}, s{s}")
        a(f"    s_and_b32 s{d+1}, s{s+1}, 0xffff")
        a(f"    s_mov_b32 s{d+2}, {0x4000000 if d != 24 else 0x10000000}")
        a(f"    s_mov_b32 s{d+3}, 0x20000")
    a("    v_lshlrev_b32 v1, 4, v3")
    if xop:
        a(f"    s_cmp_eq_u32 s20, {W}")
        a("    s_cbranch_scc0 L_str")
        for k in range(4): a(f"    v_mov_b32 v{8+k}, -1")
        if xshare:
            a("    s_and_b32 s28, s2, 7")
            a("    s_lshl_b32 s28, s28, 5")
            a("    s_lshr_b32 s29, s2, 3")
            a("    s_add_u32 s28, s28, s29")
            a(f"    s_lshr_b32 s28, s28, {xshare}")
        else:
            a("    s_mov_b32 s28, s2")
        a(f"    s_mul_i32 s28, s28, {xwg or xn*xb*1024}")
        a("    s_add_u32 s28, s28, 0x200000")
        a("    s_and_b32 s33, s2, 7")
        a("    s_lshl_b32 s33, s33, 5")
        a("    s_lshr_b32 s34, s2, 3")
        a("    s_add_u32 s33, s33, s34")
        a("    s_lshr_b32 s33, s33, 3")
        a("    s_lshl_b32 s33, s33, 21")
        if xstag:
            a("    s_lshr_b32 s29, s2, 3")
            a("    s_mul_i32 s29, s29, 11")
            a("    s_and_b32 s29, s29, 31")
            a("L_stag:")
            a(f"    s_sleep {xstag}")
            a("    s_sub_u32 s29, s29, 1")
            a("    s_cbranch_scc0 L_stag")
        if xpre != 'no':
            a("    s_mov_b32 s35, s28")
            for j in range(xn * xb):
                a(f"    buffer_load_dwordx4 v[12:15], v1, s[24:27], s35 offen {xpre}")
                a("    s_add_u32 s35, s35, 1024")
            a("    s_waitcnt vmcnt(0)")
        for b in range(xb):
            a(f"    s_sleep {xdelay}")
            for j in range(xn):
                if xop == "st":
                    a(f"    buffer_store_dwordx4 v[8:11], v1, s[24:27], s28 offen {xpol}")
                elif xop == "dma":
                    a("    s_mov_b32 m0, 131072")
                    a("    s_nop 0")
                    a(f"    buffer_load_dwordx4 v1, s[24:27], s28 offen {xpol} lds")
                elif xop == "ldk":
                    a("    s_and_b32 s29, s28, 0xffff")
                    a("    s_add_u32 s29, s29, s33")
                    a(f"    buffer_load_dwordx4 v[12:15], v1, s[8:11], s29 offen {xpol}")
                else:
                    a(f"    buffer_load_dwordx4 v[12:15], v1, s[24:27], s28 offen {xpol}")
                if xwait and (j % xwait) == xwait - 1:
                    a("    s_waitcnt vmcnt(0)")
                a("    s_add_u32 s28, s28, 1024")
            a("    s_waitcnt vmcnt(0)")
            if xwb:
                a("    buffer_wbl2 sc1")
                a("    s_waitcnt vmcnt(0)")
        a("    s_branch L_fin")
        a("L_str:")
    ring = 131072 // W
    a(f"    s_mul_i32 s23, s20, {ring}")
    if cmap == "lin":
        a("    s_mov_b32 s21, s2")
    elif cmap == "x2":
        a("    s_and_b32 s21, s2, 6")
        a("    s_lshl_b32 s21, s21, 5")
        a("    s_lshr_b32 s22, s2, 3")
        a("    s_lshl_b32 s22, s22, 1")
        a("    s_add_u32 s21, s21, s22")
        a("    s_and_b32 s22, s2, 1")
        a("    s_add_u32 s21, s21, s22")
    elif cmap == "pg":
        a("    s_and_b32 s21, s2, 7")
        a("    s_lshl_b32 s21, s21, 3")
        a("    s_bfe_u32 s22, s2, 0x30003")
        a("    s_add_u32 s21, s21, s22")
        a("    s_and_b32 s22, s2, 0xc0")
        a("    s_add_u32 s21, s21, s22")
    elif cmap == "pr":
        a("    s_and_b32 s21, s2, 7")
        a("    s_lshl_b32 s21, s21, 2")
        a("    s_bfe_u32 s22, s2, 0x20003")
        a("    s_add_u32 s21, s21, s22")
        a("    s_and_b32 s22, s2, 0xe0")
        a("    s_add_u32 s21, s21, s22")
    elif cmap == "p4":
        a("    s_and_b32 s21, s2, 7")
        a("    s_lshl_b32 s21, s21, 4")
        a("    s_bfe_u32 s22, s2, 0x40003")
        a("    s_add_u32 s21, s21, s22")
        a("    s_and_b32 s22, s2, 0x80")
        a("    s_add_u32 s21, s21, s22")
    elif cmap == "xcd":
        a("    s_and_b32 s21, s2, 7")
        a("    s_lshl_b32 s21, s21, 5")
        a("    s_lshr_b32 s22, s2, 3")
        a("    s_add_u32 s21, s21, s22")
    T = tile * 1024
    if grp > 1:
        a(f"    s_and_b32 s22, s21, {grp-1}")
        a(f"    s_andn2_b32 s21, s21, {grp-1}")
        a(f"    s_mul_i32 s22, s22, {T*W}")
        a("    s_lshl_b32 s21, s21, 18")
        a("    s_add_u32 s21, s21, s22")
    else:
        a("    s_lshl_b32 s21, s21, 18")
    a(f"    s_mul_i32 s22, s20, {T}")
    a("    s_add_u32 s21, s21, s22")
    if rot:
        if rsel == 'i':
            a("    s_mov_b32 s30, s2")
        elif rsel == 'y':
            a("    s_lshr_b32 s30, s2, 3")
        elif rsel == 'xy':
            a("    s_lshr_b32 s30, s2, 3")
            a("    s_add_u32 s30, s30, s2")
        elif rsel == 's':
            a("    s_bfe_u32 s30, s2, 0x20003")
        elif rsel == 'p':
            a("    s_lshr_b32 s30, s2, 5")
        elif rsel == 'x':
            a("    s_and_b32 s30, s2, 7")
        elif rsel == 'v5':
            a("    s_bfe_u32 s30, s2, 0x20003")
            a("    s_cmp_eq_u32 s30, 0")
            a("    s_cselect_b32 s29, 8, 12")
            a("    s_add_u32 s30, s30, s29")
        elif rsel == 'h':
            a("    s_mul_i32 s30, s2, 0x9e3779b1")
            a("    s_lshr_b32 s30, s30, 20")
        a(f"    s_mul_i32 s30, s30, {rot}")
        a(f"    s_and_b32 s30, s30, {half-1}")
    else:
        a("    s_mov_b32 s30, 0")
    a("    s_mov_b32 s31, 0")
    if touch:
        a("    s_mov_b64 exec, 1")
        a("    buffer_load_dword v4, v1, s[12:15], s21 offen nt")
        a("    s_mov_b64 exec, -1")
    def body(srd, cnt):
        for j in range(cnt):
            a("    s_add_u32 m0, s23, s31")
            if j % tile == 0:
                a("    s_add_u32 s28, s21, s30")
                a(f"    s_add_u32 s30, s30, {T*W*grp}")
                a(f"    s_and_b32 s30, s30, {half*grp-1}")
            else:
                a("    s_add_u32 s28, s28, 1024")
            if j % Q == 0:
                a(f"    s_waitcnt vmcnt({D-Q})")
            a(f"    buffer_load_dwordx4 v1, {srd}, s28 offen {pol} lds")
            a("    s_add_u32 s31, s31, 1024")
            a(f"    s_and_b32 s31, s31, {ring-1}")
    U = max(tile, Q)
    if not kvmix:
        for t, srd in ((0, "s[8:11]"), (1, "s[12:15]")):
            a("    s_mov_b32 s32, 0")
            a(f"L_loop{t}:")
            body(srd, U)
            a(f"    s_add_u32 s32, s32, {U}")
            a(f"    s_cmp_lt_u32 s32, {n}")
            a(f"    s_cbranch_scc1 L_loop{t}")
    else:
        m = kvmix // W
        a("    s_mov_b32 s32, 0")
        a("L_loop:")
        a("    s_mov_b32 s33, s30")
        body("s[8:11]", m)
        a("    s_mov_b32 s30, s33")
        body("s[12:15]", m)
        a(f"    s_add_u32 s32, s32, {m}")
        a(f"    s_cmp_lt_u32 s32, {n}")
        a("    s_cbranch_scc1 L_loop")
    a("L_fin:")
    a("    s_waitcnt vmcnt(0)")
    a("    s_memrealtime s[42:43]")
    a("    s_waitcnt lgkmcnt(0)")
    a(f"    s_mul_i32 s28, s2, {W + (1 if xop else 0)}")
    a("    s_add_u32 s28, s28, s20")
    a("    s_lshl_b32 s28, s28, 5")
    a("    s_getreg_b32 s44, hwreg(HW_REG_XCC_ID)")
    a("    s_getreg_b32 s45, hwreg(HW_REG_HW_ID)")
    for r, s in ((4, 40), (5, 41), (6, 42), (7, 43)):
        a(f"    v_mov_b32 v{r}, s{s}")
    a("    v_mov_b32 v2, 0")
    a("    v_cmp_eq_u32 vcc, 0, v3")
    a("    s_and_saveexec_b64 s[30:31], vcc")
    a("    buffer_store_dwordx4 v[4:7], v2, s[24:27], s28 offen")
    a("    s_nop 1")
    a("    v_mov_b32 v4, s44")
    a("    v_mov_b32 v5, s45")
    a("    buffer_store_dwordx2 v[4:5], v2, s[24:27], s28 offen offset:16")
    a("    s_waitcnt vmcnt(0)")
    a("L_end:")
    a("    s_endpgm")
    a(FTR.format(nvgpr=16, accum=16))
    return "\n".join(o)

if __name__ == "__main__":
    import shutil
    shutil.rmtree("k5", ignore_errors=True); os.makedirs("k5")
    for spec in sys.argv[1:]:
        kw = {}
        for o in spec.split(","):
            k, v = o.split("=")
            kw[k] = int(v) if v.lstrip("-").isdigit() else v.replace("+", " ").replace("plain", "")
        open("k5/" + spec.replace("=", "").replace(",", "_") + ".s", "w").write(gen(**kw))
```

```python
import os, shutil
from gen_stream import HDR, FTR
tests = {
 "add": lambda i: f"v_add_f32 v{16+(i&15)}, v4, v5",
 "fma": lambda i: f"v_fma_f32 v{16+(i&15)}, v4, v5, v6",
 "cvt_i32": lambda i: f"v_cvt_f32_i32 v{16+(i&15)}, v4",
 "cvt_sdwa": lambda i: f"v_cvt_f32_i32_sdwa v{16+(i&15)}, sext(v4) dst_sel:DWORD dst_unused:UNUSED_PAD src0_sel:WORD_1",
 "pk_fma": lambda i: f"v_pk_fma_f32 v[{16+2*(i&7)}:{17+2*(i&7)}], v[4:5], v[6:7], v[8:9]",
 "pk_fma_acc4": lambda i: f"v_pk_fma_f32 v[{16+2*(i&3)}:{17+2*(i&3)}], v[4:5], v[6:7], v[{16+2*(i&3)}:{17+2*(i&3)}] op_sel_hi:[1,0,1]",
 "pk_mul": lambda i: f"v_pk_mul_f32 v[{16+2*(i&7)}:{17+2*(i&7)}], v[4:5], v[6:7]",
 "pk_add": lambda i: f"v_pk_add_f32 v[{16+2*(i&7)}:{17+2*(i&7)}], v[4:5], v[6:7]",
 "pknorm": lambda i: f"v_cvt_pknorm_i16_f32 v{16+(i&15)}, v4, v5",
 "cvtpkbf": lambda i: f"v_cvt_pk_bf16_f32 v{16+(i&15)}, v4, v5",
 "bfi": lambda i: f"v_bfi_b32 v{16+(i&15)}, v4, v5, v6",
 "max3": lambda i: f"v_max3_f32 v{16+(i&15)}, |v4|, |v5|, |v6|",
 "mul24lit": lambda i: f"v_mul_u32_u24 v{16+(i&15)}, 0x800800, v5",
 "xor_s": lambda i: f"v_xor_b32 v{16+(i&15)}, s30, v5",
 "exp": lambda i: f"v_exp_f32 v{16+(i&15)}, v5",
 "swap32": lambda i: f"v_permlane32_swap_b32 v{16+2*(i&7)}, v{17+2*(i&7)}",
 "dep_add": lambda i: "v_add_f32 v16, v16, v5",
 "dep_fma": lambda i: "v_fma_f32 v16, v16, v5, v6",
 "dep_pk": lambda i: "v_pk_fma_f32 v[16:17], v[16:17], v[6:7], v[8:9]",
 "fmamix": lambda i: f"v_fma_mix_f32 v{16+(i&15)}, v4, v5, v6 op_sel:[1,0,0] op_sel_hi:[1,0,0]",
 "mad_i16": lambda i: f"v_mad_i32_i16 v{16+(i&15)}, v4, v5, v6 op_sel:[1,0,0,0]",
 "cndmask": lambda i: f"v_cndmask_b32 v{16+(i&15)}, 0, v5, vcc",
 "salu": lambda i: f"s_add_u32 s{31+(i&3)}, s30, 5",
 "snop": lambda i: "s_nop 0",
 "mfma16": lambda i: f"v_mfma_f32_16x16x16_bf16 v[{16+4*(i&3)}:{19+4*(i&3)}], v[4:5], v[6:7], v[{16+4*(i&3)}:{19+4*(i&3)}]",
 "mfma32": lambda i: f"v_mfma_f32_16x16x32_bf16 v[{16+4*(i&3)}:{19+4*(i&3)}], v[4:7], v[8:11], v[{16+4*(i&3)}:{19+4*(i&3)}]",
}
o = []; a = o.append
a(HDR.format(grid=8, block=64, lds=0))
a("    s_load_dwordx2 s[16:17], s[0:1], 56")
a("    s_waitcnt lgkmcnt(0)")
a("    s_mov_b32 s24, s16\n    s_and_b32 s25, s17, 0xffff\n    s_mov_b32 s26, 0x10000000\n    s_mov_b32 s27, 0x20000\n    s_mov_b32 s30, 3")
for r in range(2, 40): a(f"    v_mov_b32 v{r}, 1.0")
a("    v_mov_b32 v2, 0\n    s_lshl_b32 s28, s2, 8\n    s_mov_b32 s36, 0")
a("L_rep:")
for n, (name, f) in enumerate(tests.items()):
    a("    s_memtime s[40:41]\n    s_waitcnt lgkmcnt(0)")
    for i in range(64): a("    " + f(i))
    a("    s_memtime s[42:43]\n    s_waitcnt lgkmcnt(0)")
    a("    s_nop 15")
    a("    s_sub_u32 s44, s42, s40\n    v_mov_b32 v3, s44")
    a(f"    buffer_store_dword v3, v2, s[24:27], s28 offen offset:{4*n}")
    a("    s_waitcnt vmcnt(0)")
a("    s_add_u32 s36, s36, 1\n    s_cmp_lt_u32 s36, 3\n    s_cbranch_scc1 L_rep")
a("    s_endpgm")
a(FTR.format(nvgpr=64, accum=64))
os.makedirs("ka", exist_ok=True)
open("ka/ins.s", "w").write("\n".join(o)); open("ka/names.txt", "w").write("\n".join(tests))
```
